```python
import torch

def _softmax(x, axis=-1):
    return torch.softmax(x, dim=axis)
def _gelu(x):
    return torch.nn.functional.gelu(x, approximate="tanh")
def _silu(x):
    return torch.nn.functional.silu(x)
def _sigmoid(x):
    return torch.sigmoid(x)
def _layernorm(x, axis=-1, eps=1e-5):
    m = x.mean(dim=axis, keepdim=True)
    v = x.var(dim=axis, keepdim=True, unbiased=False)
    return (x - m) / torch.sqrt(v + eps)
def _scatter_add(tgt, idx, src, axis=0):
    return tgt.clone().index_add_(axis, idx, src)
def _segment_sum(src, seg, n):
    out = torch.zeros((n,) + src.shape[1:], dtype=src.dtype)
    return out.index_add_(0, seg, src)
def _pad(x, pw):
    flat = tuple(v for pair in reversed(pw) for v in pair)
    return torch.nn.functional.pad(x, flat)

kernel_name = 'standalone__geglu_ffn__sampling'

def setup_inputs():

    _w = (lambda a: (lambda t: t.to(torch.bfloat16) if t.is_floating_point() else t)(torch.as_tensor(a)))
    B, S, D, F = 32, 32, 1024, 3584
    return {
        "x": _w((lambda *s: torch.randn(*s, dtype=torch.bfloat16) * 0.05)(B, S, D)),
        "w_gate": _w((lambda *s: torch.randn(*s, dtype=torch.bfloat16) * 0.05)(D, F)),
        "w_up": _w((lambda *s: torch.randn(*s, dtype=torch.bfloat16) * 0.05)(D, F)),
        "w_down": _w((lambda *s: torch.randn(*s, dtype=torch.bfloat16) * 0.05)(F, D)),
    }

def reference(x, w_gate, w_up, w_down):
    return (_gelu(x @ w_gate) * (x @ w_up)) @ w_down
```

```python
import sys, struct

NAME = "standalone__geglu_ffn__sampling"
X_BYTES, W_BYTES, OUT_BYTES = 2097152, 7340032, 2097152
H_BYTES = 7340032
SRD3 = 0x00020000


def f32(x):
    return "0x%08x" % struct.unpack("<I", struct.pack("<f", x))[0]


class Asm:
    def __init__(self):
        self.L = []

    def __call__(self, s):
        for t in s.split("\n"):
            t = t.strip()
            if t:
                self.L.append(t if t.endswith(":") else "    " + t)

    def text(self):
        return "\n".join(self.L) + "\n"


def vr(b, n=1):
    return f"v{b}" if n == 1 else f"v[{b}:{b+n-1}]"


def srd(A, d, src, nbytes):
    A(f"s_mov_b32 s{d}, s{src}\ns_mov_b32 s{d+1}, s{src+1}\ns_mov_b32 s{d+2}, {nbytes}\ns_mov_b32 s{d+3}, 0x{SRD3:x}")


def stamp(A, cfg, idx):
    if cfg.get("stamps"):
        A(f"s_memrealtime s[90:91]\ns_waitcnt lgkmcnt(0)\nv_writelane_b32 v{cfg['stampv']}, s90, {idx}")


def stamp_store(A, cfg, slot_expr_sgpr, base_off):
    if cfg.get("stamps"):
        sv = cfg["stampv"]
        A(f"s_load_dwordx2 s[92:93], s[0:1], 48\ns_waitcnt lgkmcnt(0)")
        A(f"s_add_u32 s92, s92, {base_off}\ns_addc_u32 s93, s93, 0\ns_mov_b32 s94, 0x100000\ns_mov_b32 s95, 0x{SRD3:x}")
        A(f"s_lshl_b32 s96, s{slot_expr_sgpr}, 7\nv_mbcnt_lo_u32_b32 v{sv+1}, -1, 0\nv_mbcnt_hi_u32_b32 v{sv+1}, -1, v{sv+1}")
        A(f"v_cmp_gt_u32 vcc, 32, v{sv+1}\nv_lshlrev_b32 v{sv+1}, 2, v{sv+1}\ns_and_saveexec_b64 s[98:99], vcc")
        A(f"buffer_store_dword v{sv}, v{sv+1}, s[92:95], s96 offen\ns_waitcnt vmcnt(0)")


def gen_k1(A, cfg):
    STG, NST = 49152, 3
    K = f"{NAME}_k1_kernel"
    A(f".globl {K}\n.p2align 8\n.type {K},@function\n{K}:")
    A("s_cmp_ge_u32 s2, 224\ns_cbranch_scc1 K1_END")
    if cfg.get("stamps"):
        A(f"v_mov_b32 v{cfg['stampv']}, 0")
    stamp(A, cfg, 0)
    A("s_load_dwordx4 s[4:7], s[0:1], 0\ns_load_dwordx2 s[8:9], s[0:1], 16\ns_load_dwordx2 s[10:11], s[0:1], 48")
    A("v_lshrrev_b32 v1, 6, v0\nv_and_b32 v0, 63, v0")
    A("s_and_b32 s28, s2, 7\ns_lshr_b32 s29, s2, 3\ns_and_b32 s30, s29, 3\ns_lshr_b32 s31, s29, 2")
    A("v_readfirstlane_b32 s3, v1")
    A("s_mul_i32 s28, s28, 7\ns_add_u32 s31, s31, s28")
    A("s_cmp_ge_u32 s3, 4\ns_cbranch_scc1 K1_LOADER")

    XF = [8, 56]
    WF = [40, 88]
    ACC = 128
    VX, VW, VB = 104, 106, 108

    def acc(m, ft, tt):
        return ACC + ((m * 2 + ft) * 8 + tt) * 4

    A("s_and_b32 s32, s3, 1\ns_lshr_b32 s33, s3, 1")
    A("v_and_b32 v2, 15, v0\nv_lshrrev_b32 v3, 4, v0")
    A("v_lshrrev_b32 v4, 1, v2\nv_xor_b32 v4, v3, v4\nv_lshlrev_b32 v4, 4, v4")
    A(f"v_lshl_add_u32 v4, v2, 7, v4\ns_lshl_b32 s34, s32, 14\nv_add_u32 v{VB}, s34, v4\nv_xor_b32 v{VB+1}, 64, v{VB}")
    A("v_lshrrev_b32 v4, 2, v2\nv_and_b32 v5, 3, v2")
    A("v_lshrrev_b32 v6, 1, v4\nv_and_b32 v7, 1, v3\nv_lshl_or_b32 v6, v7, 1, v6")
    A("s_lshl_b32 s34, s33, 1\nv_xor_b32 v6, s34, v6\nv_lshlrev_b32 v6, 5, v6")
    A("v_lshl_add_u32 v6, v5, 3, v6\nv_lshl_add_u32 v6, v4, 7, v6\nv_lshl_add_u32 v6, v3, 10, v6")
    A(f"v_add_u32 v{VB+2}, 0x8000, v6\nv_xor_b32 v{VB+3}, 32, v{VB+2}")
    for i in range(4):
        A(f"v_mov_b32 v{VX+i}, v{VB+i}")
    for i in range(128):
        A(f"v_mov_b32 v{ACC+i}, 0")
    A("s_mov_b32 s35, 0\ns_mov_b32 s36, 16")

    def reads(sub, buf):
        out = []
        for m in range(2):
            for ft in range(2):
                for hh in range(2):
                    d = WF[buf] + (m * 2 + ft) * 4 + hh * 2
                    out.append(f"ds_read_b64_tr_b16 {vr(d,2)}, v{VW+ft} offset:{m*8192 + sub*4096 + hh*512}")
        xs = [f"ds_read_b128 {vr(XF[buf]+tt*4,4)}, v{VX+sub} offset:{tt*2048}" for tt in range(8)]
        return out[:8] + xs

    def mfmas(buf):
        out = []
        for tt in range(8):
            for m in range(2):
                for ft in range(2):
                    a = acc(m, ft, tt)
                    out.append(f"v_mfma_f32_16x16x32_bf16 {vr(a,4)}, {vr(WF[buf]+(m*2+ft)*4,4)}, {vr(XF[buf]+tt*4,4)}, {vr(a,4)}")
        return out

    def interleave(mf, fill):
        for i, m in enumerate(mf):
            A(m)
            if i < len(fill) and fill[i]:
                A(fill[i])

    A("s_barrier")
    stamp(A, cfg, 1)
    for r in reads(0, 0):
        A(r)
    A(".p2align 3\nK1_LOOP:")
    A("s_waitcnt lgkmcnt(0)")
    adv = [f"s_add_u32 s35, s35, {STG}\ns_cmp_eq_u32 s35, {STG*NST}", f"s_cselect_b32 s35, 0, s35\ns_sub_u32 s36, s36, 1"]
    adv += [f"v_add_u32 v{VX+i}, s35, v{VB+i}" for i in range(4)]
    interleave(mfmas(0), reads(1, 1) + adv)
    A("s_waitcnt lgkmcnt(0)\ns_barrier")
    interleave(mfmas(1), reads(0, 0))
    A("s_cmp_lg_u32 s36, 0\ns_cbranch_scc1 K1_LOOP")
    stamp(A, cfg, 2)

    c0 = -2.0 * 0.7978845608028654 * 1.4426950408889634
    c1 = c0 * 0.044715
    A("s_waitcnt lgkmcnt(0)")
    srd(A, 24, 10, H_BYTES)
    A(f"s_mov_b32 s40, {f32(c0)}\ns_mov_b32 s41, {f32(c0)}\ns_mov_b32 s42, {f32(c1)}\ns_mov_b32 s43, {f32(c1)}")
    A(f"v_mov_b32 v2, s40\nv_mov_b32 v3, s40")
    A("s_lshl_b32 s44, s30, 2\ns_lshl_b32 s45, s32, 1\ns_add_u32 s44, s44, s45\ns_mul_i32 s44, s44, 448")
    A("s_lshl_b32 s45, s31, 1\ns_add_u32 s45, s45, s33\ns_lshl_b32 s45, s45, 2\ns_add_u32 s44, s44, s45\ns_lshl_b32 s44, s44, 10")
    A(f"s_add_u32 s45, s44, {448*1024}")
    A("v_lshlrev_b32 v1, 4, v0")
    A("s_nop 7")
    for tt in range(8):
        T = 8 + (tt & 1) * 24
        O = 56 + (tt & 1) * 4
        prs = [(ft, p) for ft in range(2) for p in range(2)]
        g = lambda ft, p: acc(0, ft, tt) + 2 * p
        u = lambda ft, p: acc(1, ft, tt) + 2 * p
        t = lambda k: T + 2 * k
        for k, (ft, p) in enumerate(prs):
            A(f"v_pk_mul_f32 {vr(t(k),2)}, {vr(g(ft,p),2)}, {vr(g(ft,p),2)}")
        for k, (ft, p) in enumerate(prs):
            A(f"v_pk_fma_f32 {vr(t(k),2)}, {vr(t(k),2)}, s[42:43], v[2:3]")
        for k, (ft, p) in enumerate(prs):
            A(f"v_pk_mul_f32 {vr(t(k),2)}, {vr(t(k),2)}, {vr(g(ft,p),2)}")
        for k, (ft, p) in enumerate(prs):
            A(f"v_exp_f32 v{t(k)}, v{t(k)}\nv_exp_f32 v{t(k)+1}, v{t(k)+1}")
            A(f"v_pk_mul_f32 {vr(t(k)+8,2)}, {vr(g(ft,p),2)}, {vr(u(ft,p),2)}")
        for k in range(4):
            A(f"v_pk_add_f32 {vr(t(k),2)}, {vr(t(k),2)}, 1.0 op_sel_hi:[1,0]")
        for k in range(4):
            A(f"v_rcp_f32 v{t(k)}, v{t(k)}\nv_rcp_f32 v{t(k)+1}, v{t(k)+1}")
        A("s_nop 0")
        for k in range(4):
            A(f"v_pk_mul_f32 {vr(t(k),2)}, {vr(t(k),2)}, {vr(t(k)+8,2)}")
        for k in range(4):
            A(f"v_cvt_pk_bf16_f32 v{O+k}, v{t(k)}, v{t(k)+1}")
        A(f"buffer_store_dwordx4 {vr(O,4)}, v1, s[24:27], s{44 + (tt>>2)} offen offset:{(tt&3)*1024}")
    stamp(A, cfg, 3)
    if cfg.get("stamps"):
        A("s_waitcnt vmcnt(0)")
        stamp(A, cfg, 4)
        A("s_lshl_b32 s97, s2, 3\ns_add_u32 s97, s97, s3")
        stamp_store(A, cfg, 97, 0x1000000)
    A("s_endpgm")

    A("K1_LOADER:")
    A("s_sub_u32 s3, s3, 4")
    A("v_lshrrev_b32 v2, 3, v0\nv_and_b32 v3, 7, v0\nv_lshrrev_b32 v4, 4, v0")
    A("v_xor_b32 v5, v3, v4\nv_lshlrev_b32 v5, 4, v5\nv_lshl_add_u32 v5, v2, 11, v5")
    A("s_lshl_b32 s32, s30, 2\ns_add_u32 s32, s32, s3\ns_lshl_b32 s32, s32, 17")
    A("v_add_u32 v8, s32, v5\nv_xor_b32 v9, 64, v8\nv_add_u32 v9, 0x4000, v9")
    for p in range(2, 8):
        A(f"v_add_u32 v{8+p}, 0x8000, v{8+p-2}")
    A("v_and_b32 v4, 1, v4\nv_lshlrev_b32 v4, 1, v4\nv_xor_b32 v5, v3, v4\nv_lshlrev_b32 v5, 4, v5")
    A("s_movk_i32 s33, 7168\nv_mul_lo_u32 v6, v2, s33\nv_add_u32 v5, v5, v6")
    A(f"s_mul_i32 s33, s3, {16*7168}\ns_lshl_b32 s34, s31, 7\ns_add_u32 s33, s33, s34")
    A(f"v_add_u32 v16, s33, v5\nv_xor_b32 v17, 64, v16\nv_add_u32 v17, {8*7168}, v17")
    A("s_lshl_b32 s36, s3, 13\ns_lshl_b32 s37, s3, 11\ns_add_u32 s37, s37, 0x8000")
    A("s_mov_b32 s38, 0\ns_mov_b32 s39, 0\ns_mov_b32 s35, 0")
    A("s_waitcnt lgkmcnt(0)")
    srd(A, 12, 4, X_BYTES)
    srd(A, 16, 6, W_BYTES)
    srd(A, 20, 8, W_BYTES)

    def issue():
        A("s_add_u32 s40, s35, s37\ns_add_u32 s41, s35, s36")
        for m in range(2):
            for p in range(2):
                A(f"s_add_u32 m0, s40, {m*8192 + p*1024}\ns_nop 0")
                A(f"buffer_load_dwordx4 v{16+p}, s[{16+4*m}:{19+4*m}], s39 offen lds")
        for p in range(8):
            A(f"s_add_u32 m0, s41, {p*1024}\ns_nop 0")
            A(f"buffer_load_dwordx4 v{8+p}, s[12:15], s38 offen lds")
        A(f"s_add_u32 s38, s38, 128\ns_add_u32 s39, s39, {64*7168}")
        A(f"s_add_u32 s35, s35, {STG}\ns_cmp_eq_u32 s35, {STG*NST}\ns_cselect_b32 s35, 0, s35")

    A("s_mov_b32 s42, 0\nK1_LPRO:")
    issue()
    A("s_add_u32 s42, s42, 1\ns_cmp_lt_u32 s42, 3\ns_cbranch_scc1 K1_LPRO")
    A("s_waitcnt vmcnt(24)\ns_barrier")
    A("K1_LLOOP:")
    A("s_waitcnt vmcnt(12)\ns_barrier")
    issue()
    A("s_add_u32 s42, s42, 1\ns_cmp_lt_u32 s42, 16\ns_cbranch_scc1 K1_LLOOP")
    A("s_waitcnt vmcnt(12)\ns_barrier\ns_waitcnt vmcnt(0)\ns_barrier\ns_barrier")
    A("K1_END:\ns_endpgm")
    return K, (224, 512, STG * NST), 256


def gen_k2(A, cfg):
    R = cfg.get("k2_ring", 4)
    NB = 28
    assert NB % R == 0
    K = f"{NAME}_k2_kernel"
    A(f".globl {K}\n.p2align 8\n.type {K},@function\n{K}:")
    A("s_cmp_ge_u32 s2, 256\ns_cbranch_scc1 K2_END")
    if cfg.get("stamps"):
        A(f"v_mov_b32 v{cfg['stampv']}, 0")
    stamp(A, cfg, 0)
    A("s_load_dwordx4 s[4:7], s[0:1], 24\ns_load_dwordx2 s[8:9], s[0:1], 48")
    A("v_lshrrev_b32 v1, 6, v0\nv_and_b32 v0, 63, v0")
    A("s_and_b32 s28, s2, 7\ns_lshr_b32 s29, s2, 3")
    A("v_readfirstlane_b32 s3, v1")
    A("s_lshr_b32 s30, s28, 1\ns_lshl_b32 s30, s30, 2\ns_and_b32 s31, s29, 3\ns_add_u32 s30, s30, s31")
    A("s_and_b32 s31, s28, 1\ns_lshl_b32 s31, s31, 3\ns_lshr_b32 s29, s29, 2\ns_add_u32 s31, s31, s29")
    ACC, HF, WF = 64, 128, 32
    VH, VD, VT = 4, 5, 8
    hf = lambda slot, tt: HF + slot * 16 + tt * 4
    wf = lambda buf, dt: WF + buf * 16 + dt * 4
    acc = lambda tt, dt: ACC + (tt * 4 + dt) * 4
    A(f"v_lshlrev_b32 v{VH}, 4, v0")
    A("v_lshrrev_b32 v2, 3, v0\nv_and_b32 v3, 7, v0\nv_lshrrev_b32 v6, 4, v0\nv_lshlrev_b32 v6, 1, v6")
    A(f"v_xor_b32 v3, v3, v6\nv_lshlrev_b32 v3, 4, v3\nv_lshl_add_u32 v{VD}, v2, 11, v3")
    A("v_and_b32 v2, 15, v0\nv_lshrrev_b32 v3, 4, v0\nv_lshrrev_b32 v6, 2, v2\nv_and_b32 v7, 3, v2")
    A("v_lshrrev_b32 v12, 1, v6\nv_lshl_add_u32 v12, v3, 1, v12\nv_and_b32 v12, 3, v12\nv_lshlrev_b32 v12, 5, v12")
    A("v_lshl_add_u32 v12, v7, 3, v12\nv_lshl_add_u32 v12, v6, 7, v12\nv_lshl_add_u32 v12, v3, 9, v12")
    A(f"s_mul_i32 s34, s3, {R*4096}\nv_add_u32 v{VT}, s34, v12")
    for dt in range(1, 4):
        A(f"v_xor_b32 v{VT+dt}, {dt*32}, v{VT}")
    for i in range(64):
        A(f"v_mov_b32 v{ACC+i}, 0")
    A(f"s_mul_i32 s36, s30, {448*1024}\ns_lshl_b32 s35, s3, 12\ns_add_u32 s36, s36, s35")
    A("s_lshl_b32 s37, s31, 7\ns_lshl_b32 s35, s3, 16\ns_add_u32 s37, s37, s35")
    for p in range(1, 4):
        A(f"s_add_u32 s{37+p}, s37, {p*16384}")
    A("s_waitcnt lgkmcnt(0)")
    srd(A, 12, 4, W_BYTES)
    srd(A, 16, 8, H_BYTES)
    srd(A, 20, 6, OUT_BYTES)

    def ld_h(slot, tt):
        return f"buffer_load_dwordx4 {vr(hf(slot,tt),4)}, v{VH}, s[16:19], s36 offen offset:{tt*1024}"

    def ld_w(slot, p):
        return f"s_add_u32 m0, s34, {slot*4096 + p*1024}\ns_nop 0\nbuffer_load_dwordx4 v{VD}, s[12:15], s{37+p} offen lds"

    def adv():
        return "s_add_u32 s36, s36, 16384\n" + "\n".join(f"s_add_u32 s{37+p}, s{37+p}, 0x40000" for p in range(4))

    def trreads(slot, buf):
        for dt in range(4):
            for hh in range(2):
                A(f"ds_read_b64_tr_b16 {vr(wf(buf,dt)+hh*2,2)}, v{VT+dt} offset:{slot*4096 + hh*2048}")

    def mfma_block(slot, buf, load):
        for tt in range(4):
            for dt in range(4):
                a = acc(tt, dt)
                A(f"v_mfma_f32_16x16x32_bf16 {vr(a,4)}, {vr(wf(buf,dt),4)}, {vr(hf(slot,tt),4)}, {vr(a,4)}")
                if load and dt == 1:
                    A(ld_w(slot, tt))
            if load:
                A(ld_h(slot, tt))
        if load:
            A(adv())

    for b in range(R):
        for tt in range(4):
            A(ld_w(b, tt))
            A(ld_h(b, tt))
        A(adv())
    A(f"s_waitcnt vmcnt({8*(R-1)})")
    stamp(A, cfg, 1)
    trreads(0, 0)
    nloop = (NB - R) // R
    A(f"s_mov_b32 s42, {nloop}")
    A(".p2align 3\nK2_LOOP:")
    for j in range(R):
        b = 1 + j
        A(f"s_waitcnt vmcnt({8*(R-2)})")
        trreads(b % R, b & 1)
        A("s_waitcnt lgkmcnt(8)")
        mfma_block((b - 1) % R, (b - 1) & 1, True)
    A("s_sub_u32 s42, s42, 1\ns_cmp_lg_u32 s42, 0\ns_cbranch_scc1 K2_LOOP")
    for j in range(R):
        b = NB - R + 1 + j
        if b < NB:
            A(f"s_waitcnt vmcnt({8*(NB-1-b)})")
            trreads(b % R, b & 1)
            A("s_waitcnt lgkmcnt(8)")
        else:
            A("s_waitcnt lgkmcnt(0)")
        mfma_block((b - 1) % R, (b - 1) & 1, False)
    stamp(A, cfg, 2)
    A("s_barrier")
    A(f"s_lshl_b32 s35, s3, 14\nv_add_u32 v6, s35, v{VH}\ns_lshl_b32 s35, s3, 12\nv_add_u32 v7, s35, v{VH}")
    A("s_nop 7")
    for tt in range(4):
        for dt in range(4):
            A(f"ds_write_b128 v6, {vr(acc(tt,dt),4)} offset:{(tt*4+dt)*1024}")
    A("s_waitcnt lgkmcnt(0)\ns_barrier")
    for w in range(4):
        for dt in range(4):
            A(f"ds_read_b128 {vr(ACC+(w*4+dt)*4,4)}, v7 offset:{w*16384 + dt*1024}")
    A("v_and_b32 v2, 15, v0\nv_lshrrev_b32 v3, 4, v0\nv_lshlrev_b32 v3, 3, v3\nv_lshl_add_u32 v2, v2, 11, v3")
    A("s_lshl_b32 s35, s30, 2\ns_add_u32 s35, s35, s3\ns_lshl_b32 s35, s35, 15\ns_lshl_b32 s36, s31, 7\ns_add_u32 s35, s35, s36")
    for w in range(1, 4):
        A(f"s_waitcnt lgkmcnt({4*(3-w)})")
        for dt in range(4):
            for p in range(2):
                A(f"v_pk_add_f32 {vr(ACC+dt*4+2*p,2)}, {vr(ACC+dt*4+2*p,2)}, {vr(ACC+(w*4+dt)*4+2*p,2)}")
    for dt in range(4):
        A(f"v_cvt_pk_bf16_f32 v{16+2*dt}, v{ACC+dt*4}, v{ACC+dt*4+1}\nv_cvt_pk_bf16_f32 v{17+2*dt}, v{ACC+dt*4+2}, v{ACC+dt*4+3}")
    for dt in range(4):
        A(f"buffer_store_dwordx2 {vr(16+2*dt,2)}, v2, s[20:23], s35 offen offset:{dt*32}")
    stamp(A, cfg, 3)
    if cfg.get("stamps"):
        A("s_waitcnt vmcnt(0)")
        stamp(A, cfg, 4)
        A("s_lshl_b32 s97, s2, 3\ns_add_u32 s97, s97, s3")
        stamp_store(A, cfg, 97, 0x1100000)
    A("K2_END:\ns_endpgm")
    lds = max(4 * R * 4096, 65536)
    return K, (256, 256, lds), max(HF + R * 16, 200 if cfg.get("stamps") else 0)


HEADER = """; Kernarg layout for this problem (56 bytes, ptrs only, base s[0:1]):
;   offset  32: d_out     shape=(32, 32, 1024) dtype=bfloat16 (2 bytes/elem)
"""


def generate(cfg):
    A = Asm()
    A('.amdgcn_target "amdgcn-amd-amdhsa--gfx950"\n.text')
    ks = []
    c1 = dict(cfg); c1["stampv"] = 120
    ks.append(gen_k1(A, c1))
    c2 = dict(cfg); c2["stampv"] = 14
    ks.append(gen_k2(A, c2))
    A('.section .rodata,"a"')
    for name, _, nv in ks:
        nv = (nv + 7) // 8 * 8
        A(f".p2align 6\n.amdhsa_kernel {name}\n.amdhsa_next_free_vgpr {nv}\n.amdhsa_next_free_sgpr 102\n.amdhsa_accum_offset {nv}")
        A(".amdhsa_group_segment_fixed_size 0\n.amdhsa_kernarg_size 56\n.amdhsa_user_sgpr_count 2")
        A(".amdhsa_user_sgpr_kernarg_segment_ptr 1\n.amdhsa_system_sgpr_workgroup_id_x 1\n.end_amdhsa_kernel")
    head = HEADER + "".join(f"; @launch kernel={n} grid=({g},1,1) block=({b},1,1) lds={l}\n" for n, (g, b, l), _ in ks)
    return head + A.text()


if __name__ == "__main__":
    cfg = {}
    out = f"cdna_kernels/{NAME}.s"
    for a in sys.argv[1:]:
        k, v = a.split("=")
        if k == "out":
            out = v
        else:
            cfg[k] = int(v)
    open(out, "w").write(generate(cfg))
    print("wrote", out)
```

```python
import sys, struct

NAME = "standalone__geglu_ffn__sampling"
X_BYTES, W_BYTES, OUT_BYTES = 2097152, 7340032, 2097152
H_BYTES = 7340032
SRD3 = 0x00020000


def f32(x):
    return "0x%08x" % struct.unpack("<I", struct.pack("<f", x))[0]


class Asm:
    def __init__(self):
        self.L = []

    def __call__(self, s):
        for t in s.split("\n"):
            t = t.strip()
            if t:
                self.L.append(t if t.endswith(":") else "    " + t)

    def text(self):
        return "\n".join(self.L) + "\n"


def vr(b, n=1):
    return f"v{b}" if n == 1 else f"v[{b}:{b+n-1}]"


POL = {0: "", 1: " nt", 2: " sc1", 3: " sc0 sc1", 4: " sc1 nt", 5: " sc0"}


def srd(A, d, src, nbytes):
    A(f"s_mov_b32 s{d}, s{src}\ns_mov_b32 s{d+1}, s{src+1}\ns_mov_b32 s{d+2}, {nbytes}\ns_mov_b32 s{d+3}, 0x{SRD3:x}")


def stamp(A, cfg, idx):
    if cfg.get("stamps"):
        A(f"s_memrealtime s[90:91]\ns_memtime s[88:89]\ns_waitcnt lgkmcnt(0)\nv_writelane_b32 v{cfg['stampv']}, s90, {idx}\nv_writelane_b32 v{cfg['stampv']}, s88, {idx+16}")


def stamp_store(A, cfg, slot_expr_sgpr, base_off):
    if cfg.get("stamps"):
        sv = cfg["stampv"]
        A(f"s_load_dwordx2 s[92:93], s[0:1], 48\ns_waitcnt lgkmcnt(0)")
        A(f"s_add_u32 s92, s92, {base_off}\ns_addc_u32 s93, s93, 0\ns_mov_b32 s94, 0x100000\ns_mov_b32 s95, 0x{SRD3:x}")
        A(f"s_lshl_b32 s96, s{slot_expr_sgpr}, 7\nv_mbcnt_lo_u32_b32 v{sv+1}, -1, 0\nv_mbcnt_hi_u32_b32 v{sv+1}, -1, v{sv+1}")
        A(f"v_cmp_gt_u32 vcc, 32, v{sv+1}\nv_lshlrev_b32 v{sv+1}, 2, v{sv+1}\ns_and_saveexec_b64 s[98:99], vcc")
        A(f"buffer_store_dword v{sv}, v{sv+1}, s[92:95], s96 offen\ns_waitcnt vmcnt(0)")


def gen_k1(A, cfg):
    STG, NST = 49152, 3
    K = f"{NAME}_k1_kernel"
    A(f".globl {K}\n.p2align 8\n.type {K},@function\n{K}:")
    PF = cfg.get("pf", 0)
    A(f"s_cmp_ge_u32 s2, 224\ns_cbranch_scc1 {'K1_PF' if PF else 'K1_END'}")
    if cfg.get("stamps"):
        A(f"v_mov_b32 v{cfg['stampv']}, 0")
    stamp(A, cfg, 0)
    A("s_load_dwordx4 s[4:7], s[0:1], 0\ns_load_dwordx2 s[8:9], s[0:1], 16\ns_load_dwordx2 s[10:11], s[0:1], 48")
    A("v_lshrrev_b32 v1, 6, v0\nv_and_b32 v0, 63, v0")
    A("s_and_b32 s28, s2, 7\ns_lshr_b32 s29, s2, 3\ns_and_b32 s30, s29, 3\ns_lshr_b32 s31, s29, 2")
    A("v_readfirstlane_b32 s3, v1")
    A("s_mul_i32 s28, s28, 7\ns_add_u32 s31, s31, s28")
    A("s_cmp_ge_u32 s3, 4\ns_cbranch_scc1 K1_LOADER")

    XF = [8, 56]
    WF = [40, 88]
    ACC = 128
    VX, VW, VB = 104, 106, 108

    def acc(m, ft, tt):
        return ACC + ((m * 2 + ft) * 8 + tt) * 4

    A("s_and_b32 s32, s3, 1\ns_lshr_b32 s33, s3, 1")
    A("v_and_b32 v2, 15, v0\nv_lshrrev_b32 v3, 4, v0")
    A("v_lshrrev_b32 v4, 1, v2\nv_xor_b32 v4, v3, v4\nv_lshlrev_b32 v4, 4, v4")
    A(f"v_lshl_add_u32 v4, v2, 7, v4\ns_lshl_b32 s34, s32, 14\nv_add_u32 v{VB}, s34, v4\nv_xor_b32 v{VB+1}, 64, v{VB}")
    A("v_lshrrev_b32 v4, 2, v2\nv_and_b32 v5, 3, v2")
    A("v_lshrrev_b32 v6, 1, v4\nv_and_b32 v7, 1, v3\nv_lshl_or_b32 v6, v7, 1, v6")
    A("s_lshl_b32 s34, s33, 1\nv_xor_b32 v6, s34, v6\nv_lshlrev_b32 v6, 5, v6")
    A("v_lshl_add_u32 v6, v5, 3, v6\nv_lshl_add_u32 v6, v4, 7, v6\nv_lshl_add_u32 v6, v3, 10, v6")
    A(f"v_add_u32 v{VB+2}, 0x8000, v6\nv_xor_b32 v{VB+3}, 32, v{VB+2}")
    for i in range(4):
        A(f"v_mov_b32 v{VX+i}, v{VB+i}")
    for i in range(128):
        A(f"v_mov_b32 v{ACC+i}, 0")
    A("s_mov_b32 s35, 0\ns_mov_b32 s36, 16")

    def reads(sub, buf):
        out = []
        for m in range(2):
            for ft in range(2):
                for hh in range(2):
                    d = WF[buf] + (m * 2 + ft) * 4 + hh * 2
                    out.append(f"ds_read_b64_tr_b16 {vr(d,2)}, v{VW+ft} offset:{m*8192 + sub*4096 + hh*512}")
        xs = [f"ds_read_b128 {vr(XF[buf]+tt*4,4)}, v{VX+sub} offset:{tt*2048}" for tt in range(8)]
        return out[:8] + xs

    def mfmas(buf):
        out = []
        for tt in range(8):
            for m in range(2):
                for ft in range(2):
                    a = acc(m, ft, tt)
                    out.append(f"v_mfma_f32_16x16x32_bf16 {vr(a,4)}, {vr(WF[buf]+(m*2+ft)*4,4)}, {vr(XF[buf]+tt*4,4)}, {vr(a,4)}")
        return out

    def interleave(mf, fill):
        for i, m in enumerate(mf):
            A(m)
            if i < len(fill) and fill[i]:
                A(fill[i])

    A("s_barrier")
    stamp(A, cfg, 1)
    for r in reads(0, 0):
        A(r)
    A(".p2align 3\nK1_LOOP:")
    A("s_waitcnt lgkmcnt(0)")
    adv = [f"s_add_u32 s35, s35, {STG}\ns_cmp_eq_u32 s35, {STG*NST}", f"s_cselect_b32 s35, 0, s35\ns_sub_u32 s36, s36, 1"]
    adv += [f"v_add_u32 v{VX+i}, s35, v{VB+i}" for i in range(4)]
    interleave(mfmas(0), reads(1, 1) + adv)
    A("s_waitcnt lgkmcnt(0)\ns_barrier")
    interleave(mfmas(1), reads(0, 0))
    A("s_cmp_lg_u32 s36, 0\ns_cbranch_scc1 K1_LOOP")
    stamp(A, cfg, 2)

    c0 = -2.0 * 0.7978845608028654 * 1.4426950408889634
    c1 = c0 * 0.044715
    A("s_waitcnt lgkmcnt(0)")
    srd(A, 24, 10, H_BYTES)
    A(f"s_mov_b32 s40, {f32(c0)}\ns_mov_b32 s41, {f32(c0)}\ns_mov_b32 s42, {f32(c1)}\ns_mov_b32 s43, {f32(c1)}")
    A(f"v_mov_b32 v2, s40\nv_mov_b32 v3, s40")
    A("s_lshl_b32 s44, s30, 2\ns_lshl_b32 s45, s32, 1\ns_add_u32 s44, s44, s45\ns_mul_i32 s44, s44, 448")
    A("s_lshl_b32 s45, s31, 1\ns_add_u32 s45, s45, s33\ns_lshl_b32 s45, s45, 2\ns_add_u32 s44, s44, s45\ns_lshl_b32 s44, s44, 10")
    A(f"s_add_u32 s45, s44, {448*1024}")
    A("v_lshlrev_b32 v1, 4, v0")
    A("s_nop 7")
    for tt in range(8):
        T = 8 + (tt & 1) * 24
        O = 56 + (tt & 1) * 4
        prs = [(ft, p) for ft in range(2) for p in range(2)]
        g = lambda ft, p: acc(0, ft, tt) + 2 * p
        u = lambda ft, p: acc(1, ft, tt) + 2 * p
        t = lambda k: T + 2 * k
        for k, (ft, p) in enumerate(prs):
            A(f"v_pk_mul_f32 {vr(t(k),2)}, {vr(g(ft,p),2)}, {vr(g(ft,p),2)}")
        for k, (ft, p) in enumerate(prs):
            A(f"v_pk_fma_f32 {vr(t(k),2)}, {vr(t(k),2)}, s[42:43], v[2:3]")
        for k, (ft, p) in enumerate(prs):
            A(f"v_pk_mul_f32 {vr(t(k),2)}, {vr(t(k),2)}, {vr(g(ft,p),2)}")
        for k, (ft, p) in enumerate(prs):
            A(f"v_exp_f32 v{t(k)}, v{t(k)}\nv_exp_f32 v{t(k)+1}, v{t(k)+1}")
            A(f"v_pk_mul_f32 {vr(t(k)+8,2)}, {vr(g(ft,p),2)}, {vr(u(ft,p),2)}")
        for k in range(4):
            A(f"v_pk_add_f32 {vr(t(k),2)}, {vr(t(k),2)}, 1.0 op_sel_hi:[1,0]")
        for k in range(4):
            A(f"v_rcp_f32 v{t(k)}, v{t(k)}\nv_rcp_f32 v{t(k)+1}, v{t(k)+1}")
        A("s_nop 0")
        for k in range(4):
            A(f"v_pk_mul_f32 {vr(t(k),2)}, {vr(t(k),2)}, {vr(t(k)+8,2)}")
        for k in range(4):
            A(f"v_cvt_pk_bf16_f32 v{O+k}, v{t(k)}, v{t(k)+1}")
        A(f"buffer_store_dwordx4 {vr(O,4)}, v1, s[24:27], s{44 + (tt>>2)} offen offset:{(tt&3)*1024}{POL[cfg.get('k1_h', 0)]}")
    stamp(A, cfg, 3)
    if cfg.get("stamps"):
        A("s_waitcnt vmcnt(0)")
        stamp(A, cfg, 4)
        A("s_lshl_b32 s97, s2, 3\ns_add_u32 s97, s97, s3")
        stamp_store(A, cfg, 97, 0x1000000)
    A("s_endpgm")

    A("K1_LOADER:")
    A("s_sub_u32 s3, s3, 4")
    A("v_lshrrev_b32 v2, 3, v0\nv_and_b32 v3, 7, v0\nv_lshrrev_b32 v4, 4, v0")
    A("v_xor_b32 v5, v3, v4\nv_lshlrev_b32 v5, 4, v5\nv_lshl_add_u32 v5, v2, 11, v5")
    A("s_lshl_b32 s32, s30, 2\ns_add_u32 s32, s32, s3\ns_lshl_b32 s32, s32, 17")
    A("v_add_u32 v8, s32, v5\nv_xor_b32 v9, 64, v8\nv_add_u32 v9, 0x4000, v9")
    for p in range(2, 8):
        A(f"v_add_u32 v{8+p}, 0x8000, v{8+p-2}")
    A("v_and_b32 v4, 1, v4\nv_lshlrev_b32 v4, 1, v4\nv_xor_b32 v5, v3, v4\nv_lshlrev_b32 v5, 4, v5")
    A("s_movk_i32 s33, 7168\nv_mul_lo_u32 v6, v2, s33\nv_add_u32 v5, v5, v6")
    A(f"s_mul_i32 s33, s3, {16*7168}\ns_lshl_b32 s34, s31, 7\ns_add_u32 s33, s33, s34")
    A(f"v_add_u32 v16, s33, v5\nv_xor_b32 v17, 64, v16\nv_add_u32 v17, {8*7168}, v17")
    A("s_lshl_b32 s36, s3, 13\ns_lshl_b32 s37, s3, 11\ns_add_u32 s37, s37, 0x8000")
    A("s_mov_b32 s38, 0\ns_mov_b32 s39, 0\ns_mov_b32 s35, 0")
    A("s_waitcnt lgkmcnt(0)")
    srd(A, 12, 4, X_BYTES)
    srd(A, 16, 6, W_BYTES)
    srd(A, 20, 8, W_BYTES)

    def issue():
        A("s_add_u32 s40, s35, s37\ns_add_u32 s41, s35, s36")
        for m in range(2):
            for p in range(2):
                A(f"s_add_u32 m0, s40, {m*8192 + p*1024}\ns_nop 0")
                A(f"buffer_load_dwordx4 v{16+p}, s[{16+4*m}:{19+4*m}], s39 offen{POL[cfg.get('k1_w', 0)]} lds")
        for p in range(8):
            A(f"s_add_u32 m0, s41, {p*1024}\ns_nop 0")
            A(f"buffer_load_dwordx4 v{8+p}, s[12:15], s38 offen{POL[cfg.get('k1_x', 0)]} lds")
        A(f"s_add_u32 s38, s38, 128\ns_add_u32 s39, s39, {64*7168}")
        A(f"s_add_u32 s35, s35, {STG}\ns_cmp_eq_u32 s35, {STG*NST}\ns_cselect_b32 s35, 0, s35")

    A("s_mov_b32 s42, 0\nK1_LPRO:")
    issue()
    A("s_add_u32 s42, s42, 1\ns_cmp_lt_u32 s42, 3\ns_cbranch_scc1 K1_LPRO")
    A("s_waitcnt vmcnt(24)\ns_barrier")
    A("K1_LLOOP:")
    A("s_waitcnt vmcnt(12)\ns_barrier")
    issue()
    A("s_add_u32 s42, s42, 1\ns_cmp_lt_u32 s42, 16\ns_cbranch_scc1 K1_LLOOP")
    A("s_waitcnt vmcnt(12)\ns_barrier\ns_waitcnt vmcnt(0)\ns_barrier\ns_barrier")
    A("K1_END:\ns_endpgm")
    if PF:
        A("K1_PF:\ns_cmp_ge_u32 s2, 256\ns_cbranch_scc1 K1_END2")
        A("s_load_dwordx2 s[4:5], s[0:1], 24")
        A("v_lshrrev_b32 v1, 6, v0\nv_and_b32 v0, 63, v0\ns_sub_u32 s2, s2, 224")
        A("v_readfirstlane_b32 s3, v1")
        A("s_and_b32 s6, s2, 1\ns_lshl_b32 s6, s6, 10\ns_lshr_b32 s7, s2, 1\ns_lshl_b32 s7, s7, 3\ns_add_u32 s7, s7, s3")
        A(f"s_mul_i32 s7, s7, {28*2048}\ns_add_u32 s6, s6, s7\nv_lshlrev_b32 v1, 4, v0")
        A("s_waitcnt lgkmcnt(0)")
        srd(A, 12, 4, W_BYTES)
        for i in range(28):
            A(f"buffer_load_dwordx4 v[{4+4*(i%8)}:{7+4*(i%8)}], v1, s[12:15], s6 offen offset:{(i&1)*2048}{POL[cfg.get('pf_pol', 0)]}")
            if i & 1:
                A("s_add_u32 s6, s6, 4096")
        A("s_waitcnt vmcnt(0)\nK1_END2:\ns_endpgm")
    return K, (256 if PF else 224, 512, STG * NST), 256


def gen_k2(A, cfg):
    R = cfg.get("k2_ring", 4)
    NB = 28
    assert NB % R == 0
    K = f"{NAME}_k2_kernel"
    A(f".globl {K}\n.p2align 8\n.type {K},@function\n{K}:")
    A("s_cmp_ge_u32 s2, 256\ns_cbranch_scc1 K2_END")
    if cfg.get("stamps"):
        A(f"v_mov_b32 v{cfg['stampv']}, 0")
    stamp(A, cfg, 0)
    A("s_load_dwordx4 s[4:7], s[0:1], 24\ns_load_dwordx2 s[8:9], s[0:1], 48")
    A("v_lshrrev_b32 v1, 6, v0\nv_and_b32 v0, 63, v0")
    A("s_and_b32 s28, s2, 7\ns_lshr_b32 s29, s2, 3")
    A("v_readfirstlane_b32 s3, v1")
    A("s_lshr_b32 s30, s28, 1\ns_lshl_b32 s30, s30, 2\ns_and_b32 s31, s29, 3\ns_add_u32 s30, s30, s31")
    A("s_and_b32 s31, s28, 1\ns_lshl_b32 s31, s31, 3\ns_lshr_b32 s29, s29, 2\ns_add_u32 s31, s31, s29")
    ACC, HF, WF = 64, 128, 32
    VH, VD, VT = 4, 5, 8
    hf = lambda slot, tt: HF + slot * 16 + tt * 4
    wf = lambda buf, dt: WF + buf * 16 + dt * 4
    acc = lambda tt, dt: ACC + (tt * 4 + dt) * 4
    A(f"v_lshlrev_b32 v{VH}, 4, v0")
    A("v_lshrrev_b32 v2, 3, v0\nv_and_b32 v3, 7, v0\nv_lshrrev_b32 v6, 4, v0\nv_lshlrev_b32 v6, 1, v6")
    A(f"v_xor_b32 v3, v3, v6\nv_lshlrev_b32 v3, 4, v3\nv_lshl_add_u32 v{VD}, v2, 11, v3")
    A("v_and_b32 v2, 15, v0\nv_lshrrev_b32 v3, 4, v0\nv_lshrrev_b32 v6, 2, v2\nv_and_b32 v7, 3, v2")
    A("v_lshrrev_b32 v12, 1, v6\nv_lshl_add_u32 v12, v3, 1, v12\nv_and_b32 v12, 3, v12\nv_lshlrev_b32 v12, 5, v12")
    A("v_lshl_add_u32 v12, v7, 3, v12\nv_lshl_add_u32 v12, v6, 7, v12\nv_lshl_add_u32 v12, v3, 9, v12")
    A(f"s_mul_i32 s34, s3, {R*4096}\nv_add_u32 v{VT}, s34, v12")
    for dt in range(1, 4):
        A(f"v_xor_b32 v{VT+dt}, {dt*32}, v{VT}")
    for i in range(64):
        A(f"v_mov_b32 v{ACC+i}, 0")
    A(f"s_mul_i32 s36, s30, {448*1024}\ns_lshl_b32 s35, s3, 12\ns_add_u32 s36, s36, s35")
    A("s_lshl_b32 s37, s31, 7\ns_lshl_b32 s35, s3, 16\ns_add_u32 s37, s37, s35")
    for p in range(1, 4):
        A(f"s_add_u32 s{37+p}, s37, {p*16384}")
    A("s_waitcnt lgkmcnt(0)")
    srd(A, 12, 4, W_BYTES)
    srd(A, 16, 8, H_BYTES)
    srd(A, 20, 6, OUT_BYTES)

    def ld_h(slot, tt):
        return f"buffer_load_dwordx4 {vr(hf(slot,tt),4)}, v{VH}, s[16:19], s36 offen offset:{tt*1024}{POL[cfg.get('k2_h', 0)]}"

    def ld_w(slot, p):
        return f"s_add_u32 m0, s34, {slot*4096 + p*1024}\ns_nop 0\nbuffer_load_dwordx4 v{VD}, s[12:15], s{37+p} offen{POL[cfg.get('k2_w', 0)]} lds"

    def adv():
        return "s_add_u32 s36, s36, 16384\n" + "\n".join(f"s_add_u32 s{37+p}, s{37+p}, 0x40000" for p in range(4))

    def trreads(slot, buf):
        for dt in range(4):
            for hh in range(2):
                A(f"ds_read_b64_tr_b16 {vr(wf(buf,dt)+hh*2,2)}, v{VT+dt} offset:{slot*4096 + hh*2048}")

    def mfma_block(slot, buf, load):
        for tt in range(4):
            for dt in range(4):
                a = acc(tt, dt)
                A(f"v_mfma_f32_16x16x32_bf16 {vr(a,4)}, {vr(wf(buf,dt),4)}, {vr(hf(slot,tt),4)}, {vr(a,4)}")
                if load and dt == 1:
                    A(ld_w(slot, tt))
            if load:
                A(ld_h(slot, tt))
        if load:
            A(adv())

    for b in range(R):
        for tt in range(4):
            A(ld_w(b, tt))
            A(ld_h(b, tt))
        A(adv())
    A(f"s_waitcnt vmcnt({8*(R-1)})")
    stamp(A, cfg, 1)
    trreads(0, 0)
    nloop = (NB - R) // R
    A(f"s_mov_b32 s42, {nloop}")
    A(".p2align 3\nK2_LOOP:")
    for j in range(R):
        b = 1 + j
        A(f"s_waitcnt vmcnt({8*(R-2)})")
        trreads(b % R, b & 1)
        A("s_waitcnt lgkmcnt(8)")
        mfma_block((b - 1) % R, (b - 1) & 1, True)
    A("s_sub_u32 s42, s42, 1\ns_cmp_lg_u32 s42, 0\ns_cbranch_scc1 K2_LOOP")
    for j in range(R):
        b = NB - R + 1 + j
        if b < NB:
            A(f"s_waitcnt vmcnt({8*(NB-1-b)})")
            trreads(b % R, b & 1)
            A("s_waitcnt lgkmcnt(8)")
        else:
            A("s_waitcnt lgkmcnt(0)")
        mfma_block((b - 1) % R, (b - 1) & 1, False)
    stamp(A, cfg, 2)
    A("s_barrier")
    A(f"s_lshl_b32 s35, s3, 14\nv_add_u32 v6, s35, v{VH}\ns_lshl_b32 s35, s3, 12\nv_add_u32 v7, s35, v{VH}")
    A("s_nop 7")
    for tt in range(4):
        for dt in range(4):
            A(f"ds_write_b128 v6, {vr(acc(tt,dt),4)} offset:{(tt*4+dt)*1024}")
    A("s_waitcnt lgkmcnt(0)\ns_barrier")
    for w in range(4):
        for dt in range(4):
            A(f"ds_read_b128 {vr(ACC+(w*4+dt)*4,4)}, v7 offset:{w*16384 + dt*1024}")
    A("v_and_b32 v2, 15, v0\nv_lshrrev_b32 v3, 4, v0\nv_lshlrev_b32 v3, 3, v3\nv_lshl_add_u32 v2, v2, 11, v3")
    A("s_lshl_b32 s35, s30, 2\ns_add_u32 s35, s35, s3\ns_lshl_b32 s35, s35, 15\ns_lshl_b32 s36, s31, 7\ns_add_u32 s35, s35, s36")
    for w in range(1, 4):
        A(f"s_waitcnt lgkmcnt({4*(3-w)})")
        for dt in range(4):
            for p in range(2):
                A(f"v_pk_add_f32 {vr(ACC+dt*4+2*p,2)}, {vr(ACC+dt*4+2*p,2)}, {vr(ACC+(w*4+dt)*4+2*p,2)}")
    for dt in range(4):
        A(f"v_cvt_pk_bf16_f32 v{16+2*dt}, v{ACC+dt*4}, v{ACC+dt*4+1}\nv_cvt_pk_bf16_f32 v{17+2*dt}, v{ACC+dt*4+2}, v{ACC+dt*4+3}")
    for dt in range(4):
        A(f"buffer_store_dwordx2 {vr(16+2*dt,2)}, v2, s[20:23], s35 offen offset:{dt*32}")
    stamp(A, cfg, 3)
    if cfg.get("stamps"):
        A("s_waitcnt vmcnt(0)")
        stamp(A, cfg, 4)
        A("s_lshl_b32 s97, s2, 3\ns_add_u32 s97, s97, s3")
        stamp_store(A, cfg, 97, 0x1100000)
    A("K2_END:\ns_endpgm")
    lds = max(4 * R * 4096, 65536)
    return K, (256, 256, lds), max(HF + R * 16, 200 if cfg.get("stamps") else 0)


HEADER = """; Kernarg layout for this problem (56 bytes, ptrs only, base s[0:1]):
;   offset  32: d_out     shape=(32, 32, 1024) dtype=bfloat16 (2 bytes/elem)
"""


def generate(cfg):
    A = Asm()
    A('.amdgcn_target "amdgcn-amd-amdhsa--gfx950"\n.text')
    ks = []
    c1 = dict(cfg); c1["stampv"] = 120
    ks.append(gen_k1(A, c1))
    c2 = dict(cfg); c2["stampv"] = 14
    ks.append(gen_k2(A, c2))
    A('.section .rodata,"a"')
    for name, _, nv in ks:
        nv = (nv + 7) // 8 * 8
        A(f".p2align 6\n.amdhsa_kernel {name}\n.amdhsa_next_free_vgpr {nv}\n.amdhsa_next_free_sgpr 102\n.amdhsa_accum_offset {nv}")
        A(".amdhsa_group_segment_fixed_size 0\n.amdhsa_kernarg_size 56\n.amdhsa_user_sgpr_count 2")
        A(".amdhsa_user_sgpr_kernarg_segment_ptr 1\n.amdhsa_system_sgpr_workgroup_id_x 1\n.end_amdhsa_kernel")
    head = HEADER + "".join(f"; @launch kernel={n} grid=({g},1,1) block=({b},1,1) lds={l}\n" for n, (g, b, l), _ in ks)
    return head + A.text()


if __name__ == "__main__":
    cfg = {}
    out = f"cdna_kernels/{NAME}.s"
    for a in sys.argv[1:]:
        k, v = a.split("=")
        if k == "out":
            out = v
        else:
            cfg[k] = int(v)
    open(out, "w").write(generate(cfg))
    print("wrote", out)
```

```python
import sys, re
src, dst, grp, idx, stat = sys.argv[1], sys.argv[2], sys.argv[3], int(sys.argv[4]), sys.argv[5]
s = open(src).read()
K = "standalone__geglu_ffn__sampling_kernel"
s = s.replace("; @launch grid=(256,1,1) block=(512,1,1) lds=163840",
              f"; @launch kernel={K} grid=(256,1,1) block=(512,1,1) lds=163840\n; @launch kernel=rep_kernel grid=(1,1,1) block=(64,1,1) lds=0")
js = range(28) if grp in "BA" else (range(28, 32) if grp == "I" else range(32))
lanes = [l for l in range(64) if grp in ("I", "all") or ((l & 7) < 4) == (grp == "B")]
b = [".globl rep_kernel", ".p2align 8", ".type rep_kernel,@function", "rep_kernel:",
     "s_cmp_lg_u32 s2, 0", "s_cbranch_scc1 R_END", "s_load_dwordx2 s[4:5], s[0:1], 48", "s_waitcnt lgkmcnt(0)",
     "s_add_u32 s8, s4, 0x1000000", "s_addc_u32 s9, s5, 0", "s_mov_b32 s10, 0x100000", "s_mov_b32 s11, 0x00020000",
     "v_lshlrev_b32 v1, 7, v0", "s_mov_b32 s12, 0"]
for j in range(32):
    b += [f"buffer_load_dword v{10+j}, v1, s[8:11], s12 offen", f"buffer_load_dword v{50+j}, v1, s[8:11], s12 offen offset:{4*idx}", "s_add_u32 s12, s12, 8192"]
b += ["s_waitcnt vmcnt(0)", "v_readfirstlane_b32 s13, v10", "v_mov_b32 v2, 0", "v_bfrev_b32 v3, 1", "v_mov_b32 v4, 0"]
for j in range(32):
    b += [f"v_subrev_u32 v5, s13, v{10+j}", "v_min_i32 v2, v2, v5"]
for j in js:
    b += [f"v_subrev_u32 v5, s13, v{50+j}", "v_max_i32 v3, v3, v5", "v_add_u32 v4, v4, v5"]
b += ["s_mov_b32 s14, 0", "s_brev_b32 s15, 1", "s_mov_b32 s16, 0", "s_nop 4"]
for l in range(64):
    b += [f"v_readlane_b32 s17, v2, {l}", "s_min_i32 s14, s14, s17"]
for l in lanes:
    b += [f"v_readlane_b32 s17, v3, {l}", f"v_readlane_b32 s18, v4, {l}", "s_max_i32 s15, s15, s17", "s_add_u32 s16, s16, s18"]
n = len(lanes) * len(js)
if stat == "max":
    b += ["s_sub_u32 s15, s15, s14", "s_lshl_b32 s15, s15, 4"]
elif stat == "mean":
    b += [f"s_mul_i32 s14, s14, {n}", "s_sub_u32 s16, s16, s14", "v_cvt_f32_u32 v5, s16", f"v_mul_f32 v5, {16.0/n!r}, v5", "v_cvt_u32_f32 v5, v5", "s_nop 1", "v_readfirstlane_b32 s15, v5"]
else:
    b += ["s_mov_b32 s15, 0"]
b += ["s_min_u32 s15, s15, 160000", "s_memrealtime s[20:21]", "s_waitcnt lgkmcnt(0)", "R_LOOP:", "s_memrealtime s[22:23]", "s_waitcnt lgkmcnt(0)",
      "s_sub_u32 s22, s22, s20", "s_cmp_lt_u32 s22, s15", "s_cbranch_scc1 R_LOOP", "R_END:", "s_endpgm", ""]
i = s.index('.section .rodata')
kd = s[i:]
m = re.search(r"\.amdhsa_kernel.*?\.end_amdhsa_kernel\n", kd, re.S)
s = s[:i] + "\n".join(b) + kd[:m.end()] + ".p2align 6\n" + m.group(0).replace(K, "rep_kernel") + kd[m.end():]
open(dst, "w").write(s)
```
